```python
import torch

def _softmax(x, axis=-1):
    return torch.softmax(x, dim=axis)
def _gelu(x):
    return torch.nn.functional.gelu(x, approximate="tanh")
def _silu(x):
    return torch.nn.functional.silu(x)
def _sigmoid(x):
    return torch.sigmoid(x)
def _layernorm(x, axis=-1, eps=1e-5):
    m = x.mean(dim=axis, keepdim=True)
    v = x.var(dim=axis, keepdim=True, unbiased=False)
    return (x - m) / torch.sqrt(v + eps)
def _scatter_add(tgt, idx, src, axis=0):
    return tgt.clone().index_add_(axis, idx, src)
def _segment_sum(src, seg, n):
    out = torch.zeros((n,) + src.shape[1:], dtype=src.dtype)
    return out.index_add_(0, seg, src)
def _pad(x, pw):
    flat = tuple(v for pair in reversed(pw) for v in pair)
    return torch.nn.functional.pad(x, flat)

kernel_name = 'standalone__instancenorm__prompt'

def setup_inputs():

    _w = (lambda a: (lambda t: t.to(torch.bfloat16) if t.is_floating_point() else t)(torch.as_tensor(a)))
    B, C, H, W = 1, 512, 2048, 32
    return {
        "x": _w(abs((lambda *s: torch.randn(*s, dtype=torch.bfloat16) * 0.05)(B, C, H, W))),
        "g": _w((lambda *s: torch.randn(*s, dtype=torch.bfloat16) * 0.05)(C) + 1.0),
        "b": _w((lambda *s: torch.randn(*s, dtype=torch.bfloat16) * 0.4)(C)),
    }

def reference(x, g, b):
    mu = x.mean(axis=(-2, -1), keepdims=True)
    var = ((x - mu) ** 2).mean(axis=(-2, -1), keepdims=True)
    xhat = (x - mu) / torch.sqrt(var + 1e-5)
    return xhat * g.reshape(1, -1, 1, 1) + b.reshape(1, -1, 1, 1)
```

```python
import sys, argparse

HEADER = """; Kernarg layout for this problem (48 bytes, ptrs only, base s[0:1]):
;   offset   0: d_in[0] x  shape=(1, 512, 2048, 32) dtype=bfloat16 strides=(67108864, 131072, 64, 2) contiguous=True
;   offset   8: d_in[1] g  shape=(512,) dtype=bfloat16 strides=(2,) contiguous=True
;   offset  16: d_in[2] b  shape=(512,) dtype=bfloat16 strides=(2,) contiguous=True
"""
NAME = "standalone__instancenorm__prompt_kernel"
CH_BYTES = 131072
NELEM = 65536


class G:
    def __init__(s, T=1024, nch=1, ld="", st="", layout="wg", sched="simple", lds=256,
                 chmap="adj", pre=8, vgpr=None, barrier_ab=True, copy=False):
        s.T, s.nch, s.ld, s.st, s.layout, s.sched, s.lds = T, nch, ld, st, layout, sched, lds
        s.chmap, s.pre, s.barrier_ab, s.copy = chmap, pre, barrier_ab, copy
        s.NW = T // 64
        s.NL = CH_BYTES // (T * 16)
        s.L = []
        s.vOFF = 0
        s.vLDS = 1
        s.vS1 = 2
        s.vS2 = 4
        s.vT = 6
        s.vP = 14
        s.vD = 14 + 4 * nch
        s.vD += s.vD % 2
        s.nv = s.vD + nch * s.NL * 4
        s.vgpr = vgpr or s.nv
        s.sX = 12
        s.sO = 16
        s.sMASK = 20
        s.sG = 21
        s.sB = 22
        s.sSH = 24
        s.sNS = 26
        s.sOFF = 32
        s.outstanding = []

    def e(s, x):
        s.L.append("    " + x)

    def d(s, ch, j):
        b = s.vD + (ch * s.NL + j) * 4
        return b

    def addr(s, ch, j):
        chb = ch * s.chstride
        if s.layout == "wg":
            off = chb + j * s.T * 16
        else:
            off = chb + j * 1024
        imm = off % 4096
        so = off - imm
        return so, imm

    def soff(s, so):
        if so == 0:
            return "0"
        return "s%d" % s.somap[so]

    def load(s, ch, j):
        so, imm = s.addr(ch, j)
        b = s.d(ch, j)
        o = " offset:%d" % imm if imm else ""
        s.e("buffer_load_dwordx4 v[%d:%d], v%d, s[%d:%d], %s offen%s %s" % (b, b + 3, s.vOFF, s.sX, s.sX + 3, s.soff(so), o, s.ld))
        s.outstanding.append(("L", ch, j))

    def store(s, ch, j):
        so, imm = s.addr(ch, j)
        b = s.d(ch, j)
        o = " offset:%d" % imm if imm else ""
        s.e("buffer_store_dwordx4 v[%d:%d], v%d, s[%d:%d], %s offen%s %s" % (b, b + 3, s.vOFF, s.sO, s.sO + 3, s.soff(so), o, s.st))
        s.outstanding.append(("S", ch, j))

    def wait_load(s, ch, j):
        i = s.outstanding.index(("L", ch, j))
        n = len(s.outstanding) - 1 - i
        s.e("s_waitcnt vmcnt(%d)" % min(n, 63))
        s.outstanding = s.outstanding[i + 1:]

    def stats(s, ch, j, first):
        b = s.d(ch, j)
        t = s.vT
        ns = s.sNS + 2 * ch
        for k in range(4):
            s.e("v_lshlrev_b32 v%d, 16, v%d" % (t + 2 * k, b + k))
            s.e("v_and_b32 v%d, s%d, v%d" % (t + 2 * k + 1, s.sMASK, b + k))
        for k in range(4):
            s.e("v_pk_add_f32 v[%d:%d], v[%d:%d], s[%d:%d]" % (t + 2 * k, t + 2 * k + 1, t + 2 * k, t + 2 * k + 1, ns, ns + 1))
        for k in range(4):
            a = t + 2 * k
            if first and k == 0:
                s.e("v_pk_mul_f32 v[%d:%d], v[%d:%d], v[%d:%d]" % (s.vS2, s.vS2 + 1, a, a + 1, a, a + 1))
            else:
                if first and k == 1:
                    s.e("v_pk_add_f32 v[%d:%d], v[%d:%d], v[%d:%d]" % (s.vS1, s.vS1 + 1, t, t + 1, a, a + 1))
                else:
                    s.e("v_pk_add_f32 v[%d:%d], v[%d:%d], v[%d:%d]" % (s.vS1, s.vS1 + 1, s.vS1, s.vS1 + 1, a, a + 1))
                s.e("v_pk_fma_f32 v[%d:%d], v[%d:%d], v[%d:%d], v[%d:%d]" % (s.vS2, s.vS2 + 1, a, a + 1, a, a + 1, s.vS2, s.vS2 + 1))

    def wave_reduce_write(s, ch):
        a, b = s.vS1, s.vS1 + 1
        s.e("v_add_f32 v%d, v%d, v%d" % (a, s.vS1, s.vS1 + 1))
        s.e("v_add_f32 v%d, v%d, v%d" % (b, s.vS2, s.vS2 + 1))
        s.e("s_nop 0")
        for m in ("row_ror:8", "row_ror:4", "row_ror:2", "row_ror:1"):
            s.e("v_add_f32_dpp v%d, v%d, v%d %s row_mask:0xf bank_mask:0xf" % (a, a, a, m))
            s.e("v_add_f32_dpp v%d, v%d, v%d %s row_mask:0xf bank_mask:0xf" % (b, b, b, m))
            s.e("s_nop 0")
        s.e("v_add_f32_dpp v%d, v%d, v%d row_bcast:15 row_mask:0xa bank_mask:0xf" % (a, a, a))
        s.e("v_add_f32_dpp v%d, v%d, v%d row_bcast:15 row_mask:0xa bank_mask:0xf" % (b, b, b))
        s.e("s_nop 0")
        s.e("v_add_f32_dpp v%d, v%d, v%d row_bcast:31 row_mask:0xc bank_mask:0xf" % (a, a, a))
        s.e("v_add_f32_dpp v%d, v%d, v%d row_bcast:31 row_mask:0xc bank_mask:0xf" % (b, b, b))
        s.e("s_mov_b64 exec, s[30:31]")
        s.e("ds_write_b64 v%d, v[%d:%d] offset:%d" % (s.vLDS, a, b, ch * 128))
        s.e("s_mov_b64 exec, -1")

    def finalize(s, ch):
        t = s.vT
        a, b = t, t + 1
        s.e("v_and_b32 v%d, %d, v%d" % (t + 2, (s.NW - 1) * 16, s.vOFF))
        s.e("v_lshrrev_b32 v%d, 1, v%d" % (t + 2, t + 2))
        s.e("s_waitcnt lgkmcnt(0)")
        s.e("s_barrier")
        s.e("ds_read_b64 v[%d:%d], v%d offset:%d" % (a, b, t + 2, ch * 128))
        s.e("s_waitcnt lgkmcnt(0)")
        s.e("s_nop 0")
        r = s.NW // 2
        while r >= 1:
            s.e("v_add_f32_dpp v%d, v%d, v%d row_ror:%d row_mask:0xf bank_mask:0xf" % (a, a, a, r))
            s.e("v_add_f32_dpp v%d, v%d, v%d row_ror:%d row_mask:0xf bank_mask:0xf" % (b, b, b, r))
            if r > 1:
                s.e("s_nop 0")
            r //= 2
        ns = s.sNS + 2 * ch
        p = s.vP + 4 * ch
        s.e("v_mul_f32 v%d, 0x37800000, v%d" % (a, a))
        s.e("v_mul_f32 v%d, 0x37800000, v%d" % (b, b))
        s.e("v_subrev_f32 v%d, s%d, v%d" % (t + 2, ns, a))
        s.e("v_fma_f32 v%d, -v%d, v%d, v%d" % (b, a, a, b))
        s.e("v_cvt_pk_bf16_f32 v%d, v%d, v%d" % (t + 2, t + 2, t + 2))
        s.e("v_max_f32 v%d, 0, v%d" % (b, b))
        s.e("v_and_b32 v%d, s%d, v%d" % (t + 2, s.sMASK, t + 2))
        s.e("v_add_f32 v%d, s%d, v%d" % (t + 3, ns, t + 2))
        s.e("v_sub_f32 v%d, 0, v%d" % (p, t + 2))
        s.e("v_sub_f32 v%d, v%d, v%d" % (t + 3, t + 3, a))
        s.e("v_fma_f32 v%d, v%d, v%d, v%d" % (b, t + 3, t + 3, b))
        s.e("v_cvt_pk_bf16_f32 v%d, v%d, v%d" % (b, b, b))
        s.e("v_and_b32 v%d, s%d, v%d" % (b, s.sMASK, b))
        s.e("v_add_f32 v%d, 0x3727c5ac, v%d" % (b, b))
        s.e("v_cvt_pk_bf16_f32 v%d, v%d, v%d" % (b, b, b))
        s.e("v_and_b32 v%d, s%d, v%d" % (b, s.sMASK, b))
        s.e("v_sqrt_f32 v%d, v%d" % (b, b))
        s.e("v_mov_b32 v%d, s%d" % (p + 3, s.sBf + ch))
        s.e("v_cvt_pk_bf16_f32 v%d, v%d, v%d" % (b, b, b))
        s.e("v_and_b32 v%d, s%d, v%d" % (b, s.sMASK, b))
        s.e("v_rcp_f32 v%d, v%d" % (b, b))
        s.e("s_nop 0")
        s.e("v_mul_f32 v%d, s%d, v%d" % (p + 2, s.sGf + ch, b))

    def norm(s, ch, j):
        b = s.d(ch, j)
        t = s.vT
        p = s.vP + 4 * ch
        for k in range(4):
            s.e("v_lshlrev_b32 v%d, 16, v%d" % (t + 2 * k, b + k))
            s.e("v_and_b32 v%d, s%d, v%d" % (t + 2 * k + 1, s.sMASK, b + k))
        for k in range(4):
            a = t + 2 * k
            s.e("v_pk_add_f32 v[%d:%d], v[%d:%d], v[%d:%d] op_sel_hi:[1,0]" % (a, a + 1, a, a + 1, p, p + 1))
        for k in range(4):
            a = t + 2 * k
            s.e("v_pk_fma_f32 v[%d:%d], v[%d:%d], v[%d:%d], v[%d:%d] op_sel:[0,0,1] op_sel_hi:[1,0,1]" % (a, a + 1, a, a + 1, p + 2, p + 3, p + 2, p + 3))
        for k in range(4):
            a = t + 2 * k
            s.e("v_cvt_pk_bf16_f32 v%d, v%d, v%d" % (b + k, a, a + 1))

    def gen(s):
        nwg = 512 // s.nch
        s.chstride = CH_BYTES if s.chmap == "adj" else CH_BYTES * nwg
        s.somap = {}
        for ch in range(s.nch):
            for j in range(s.NL):
                so, imm = s.addr(ch, j)
                if so and so not in s.somap:
                    s.somap[so] = s.sOFF + len(s.somap)
        nso = s.sOFF + len(s.somap)
        s.sGf = nso
        s.sBf = nso + 2
        nsgpr = nso + 4
        out = [HEADER + "; @launch grid=(%d,1,1) block=(%d,1,1) lds=%d" % (nwg, s.T, s.lds),
               '.amdgcn_target "amdgcn-amd-amdhsa--gfx950"', ".text", ".globl " + NAME, ".p2align 8",
               ".type %s,@function" % NAME, NAME + ":"]
        e = s.e
        e("s_cmp_ge_u32 s2, %d" % nwg)
        e("s_cbranch_scc1 L_end")
        e("s_load_dwordx4 s[4:7], s[0:1], 0")
        e("s_load_dwordx4 s[8:11], s[0:1], 16")
        e("v_lshrrev_b32 v%d, 6, v0" % s.vLDS)
        if s.layout == "wg":
            e("v_lshlrev_b32 v%d, 4, v0" % s.vOFF)
        else:
            e("v_and_b32 v%d, 63, v0" % s.vT)
            e("v_lshlrev_b32 v%d, 4, v%d" % (s.vT, s.vT))
            sh = (s.NL * 1024).bit_length() - 1
            e("v_lshl_add_u32 v%d, v%d, %d, v%d" % (s.vOFF, s.vLDS, sh, s.vT))
        e("v_lshlrev_b32 v%d, 3, v%d" % (s.vLDS, s.vLDS))
        for so, r in s.somap.items():
            e("s_mov_b32 s%d, 0x%x" % (r, so))
        e("s_mov_b32 s%d, 0xffff0000" % s.sMASK)
        e("s_mov_b32 s30, 0")
        e("s_mov_b32 s31, 0x80000000")
        span = s.chstride * (s.nch - 1) + CH_BYTES
        e("s_mov_b32 s%d, 0x%x" % (s.sX + 2, span))
        e("s_mov_b32 s%d, 0x20000" % (s.sX + 3))
        e("s_mov_b32 s%d, 0x%x" % (s.sO + 2, span))
        e("s_mov_b32 s%d, 0x20000" % (s.sO + 3))
        wgb = CH_BYTES * s.nch if s.chmap == "adj" else CH_BYTES
        e("s_lshl_b32 s3, s2, %d" % (wgb.bit_length() - 1))
        if s.chmap == "adj" and s.nch == 2:
            e("s_lshl_b32 s23, s2, 1")
        else:
            e("s_mov_b32 s23, s2")
        e("s_waitcnt lgkmcnt(0)")
        e("s_add_u32 s%d, s4, s3" % s.sX)
        e("s_addc_u32 s%d, s5, 0" % (s.sX + 1))
        first_loads = s.NL
        for j in range(s.NL):
            s.load(0, j)
        e("s_add_u32 s%d, s10, s3" % s.sO)
        e("s_addc_u32 s%d, s11, 0" % (s.sO + 1))
        e("s_load_dword s%d, s[%d:%d], 0" % (s.sSH, s.sX, s.sX + 1))
        if s.nch == 2:
            e("s_add_u32 s4, s%d, 0x%x" % (s.sX, s.chstride))
            e("s_addc_u32 s5, s%d, 0" % (s.sX + 1))
            e("s_load_dword s%d, s[4:5], 0" % (s.sSH + 1))
        cstep = 1 if s.chmap == "adj" else nwg
        e("s_lshr_b32 s3, s23, 1")
        e("s_lshl_b32 s3, s3, 2")
        e("s_load_dword s%d, s[6:7], s3" % s.sGf)
        e("s_load_dword s%d, s[8:9], s3" % s.sBf)
        if s.nch == 2 and s.chmap != "adj":
            e("s_add_u32 s3, s3, %d" % (nwg * 2))
            e("s_load_dword s%d, s[6:7], s3" % (s.sGf + 1))
            e("s_load_dword s%d, s[8:9], s3" % (s.sBf + 1))

        def scalar_fix():
            e("s_waitcnt lgkmcnt(0)")
            for ch in range(s.nch):
                e("s_lshl_b32 s%d, s%d, 16" % (s.sNS + 2 * ch, s.sSH + ch))
                e("s_xor_b32 s%d, s%d, 0x80000000" % (s.sNS + 2 * ch, s.sNS + 2 * ch))
                e("s_mov_b32 s%d, s%d" % (s.sNS + 2 * ch + 1, s.sNS + 2 * ch))
            if s.nch == 2 and s.chmap == "adj":
                e("s_and_b32 s%d, s%d, s%d" % (s.sGf + 1, s.sGf, s.sMASK))
                e("s_lshl_b32 s%d, s%d, 16" % (s.sGf, s.sGf))
                e("s_and_b32 s%d, s%d, s%d" % (s.sBf + 1, s.sBf, s.sMASK))
                e("s_lshl_b32 s%d, s%d, 16" % (s.sBf, s.sBf))
            else:
                e("s_and_b32 s3, s23, 1")
                e("s_lshl_b32 s3, s3, 4")
                for ch in range(s.nch):
                    e("s_lshr_b32 s%d, s%d, s3" % (s.sGf + ch, s.sGf + ch))
                    e("s_lshl_b32 s%d, s%d, 16" % (s.sGf + ch, s.sGf + ch))
                    e("s_lshr_b32 s%d, s%d, s3" % (s.sBf + ch, s.sBf + ch))
                    e("s_lshl_b32 s%d, s%d, 16" % (s.sBf + ch, s.sBf + ch))

        NL = s.NL
        if s.nch == 1:
            scalar_fix()
            for j in range(NL):
                s.wait_load(0, j)
                s.stats(0, j, j == 0)
            s.wave_reduce_write(0)
            s.finalize(0)
            for j in range(NL):
                s.norm(0, j)
                s.store(0, j)
        elif s.sched == "simple":
            if s.barrier_ab:
                e("s_barrier")
            for j in range(NL):
                s.load(1, j)
            scalar_fix()
            for ch in range(2):
                for j in range(NL):
                    s.wait_load(ch, j)
                    s.stats(ch, j, j == 0)
                s.wave_reduce_write(ch)
                s.finalize(ch)
                for j in range(NL):
                    s.norm(ch, j)
                    s.store(ch, j)
        elif s.sched == "inter":
            scalar_fix()
            nb = 0
            for j in range(NL):
                s.wait_load(0, j)
                if j >= NL - s.pre:
                    s.load(1, nb); nb += 1
                s.stats(0, j, j == 0)
            s.wave_reduce_write(0)
            s.finalize(0)
            for j in range(NL):
                s.norm(0, j)
                s.store(0, j)
                if nb < NL:
                    s.load(1, nb); nb += 1
            for j in range(NL):
                s.wait_load(1, j)
                s.stats(1, j, j == 0)
            s.wave_reduce_write(1)
            s.finalize(1)
            for j in range(NL):
                s.norm(1, j)
                s.store(1, j)
        elif s.sched == "phase":
            scalar_fix()
            for j in range(NL):
                s.wait_load(0, j)
                s.load(1, j)
                s.stats(0, j, j == 0)
            s.wave_reduce_write(0)
            s.finalize(0)
            h = s.pre
            for j in range(h):
                s.norm(0, j)
                s.store(0, j)
            for j in range(NL):
                s.wait_load(1, j)
                s.stats(1, j, j == 0)
            s.wave_reduce_write(1)
            for j in range(h, NL):
                s.norm(0, j)
                s.store(0, j)
            s.finalize(1)
            for j in range(NL):
                s.norm(1, j)
                s.store(1, j)
        s.L.append("L_end:")
        e("s_endpgm")
        acc = (s.vgpr + 3) // 4 * 4
        tail = """.section .rodata,"a"
.p2align 6
.amdhsa_kernel %s
  .amdhsa_next_free_vgpr %d
  .amdhsa_next_free_sgpr %d
  .amdhsa_accum_offset %d
  .amdhsa_group_segment_fixed_size 0
  .amdhsa_kernarg_size 48
  .amdhsa_user_sgpr_count 2
  .amdhsa_user_sgpr_kernarg_segment_ptr 1
  .amdhsa_system_sgpr_workgroup_id_x 1
  .amdhsa_float_denorm_mode_32 3
.end_amdhsa_kernel
""" % (NAME, s.vgpr, nsgpr, min(acc, 256))
        return "\n".join(out + s.L) + "\n" + tail


def parse(spec):
    kw = {}
    for kv in spec.split(","):
        if not kv:
            continue
        k, v = kv.split("=")
        if k in ("ld", "st"):
            v = v.replace("+", " ")
        elif k in ("T", "nch", "lds", "pre", "vgpr"):
            v = int(v)
        elif k in ("barrier_ab", "copy"):
            v = bool(int(v))
        kw[k] = v
    return kw


if __name__ == "__main__":
    spec, path = sys.argv[1], sys.argv[2]
    open(path, "w").write(G(**parse(spec)).gen())
```
